```python
import torch

def _softmax(x, axis=-1):
    return torch.softmax(x, dim=axis)
def _gelu(x):
    return torch.nn.functional.gelu(x, approximate="tanh")
def _silu(x):
    return torch.nn.functional.silu(x)
def _sigmoid(x):
    return torch.sigmoid(x)
def _layernorm(x, axis=-1, eps=1e-5):
    m = x.mean(dim=axis, keepdim=True)
    v = x.var(dim=axis, keepdim=True, unbiased=False)
    return (x - m) / torch.sqrt(v + eps)
def _scatter_add(tgt, idx, src, axis=0):
    return tgt.clone().index_add_(axis, idx, src)
def _segment_sum(src, seg, n):
    out = torch.zeros((n,) + src.shape[1:], dtype=src.dtype)
    return out.index_add_(0, seg, src)
def _pad(x, pw):
    flat = tuple(v for pair in reversed(pw) for v in pair)
    return torch.nn.functional.pad(x, flat)

kernel_name = 'concat_heads__gqa_block_cached__mha_block_cached__near_ridge'

def setup_inputs():

    _w = (lambda a: (lambda t: t.to(torch.bfloat16) if t.is_floating_point() else t)(torch.as_tensor(a)))
    def _A_setup():
        B, Sq, D = 16, 48, 512
        Hq, Hkv, Sk, Dh = 32, 8, 512, 128
        assert Hq % Hkv == 0, (Hq, Hkv)
        return {
            "x": _w((lambda *s: torch.randn(*s, dtype=torch.bfloat16) * 0.8)(B, Sq, D)),
            "k_cache": _w((lambda *s: torch.randn(*s, dtype=torch.bfloat16) * 0.8)(B, Hkv, Sk, Dh)),
            "v_cache": _w((lambda *s: torch.randn(*s, dtype=torch.bfloat16) * 0.05)(B, Hkv, Sk, Dh)),
            "wq": _w((lambda *s: torch.randn(*s, dtype=torch.bfloat16) * 0.8)(D, Hq * Dh) * (D ** -0.5)),
            "wo": _w((lambda *s: torch.randn(*s, dtype=torch.bfloat16) * 0.05)(Hq * Dh, D) * ((Hq * Dh) ** -0.5)),
        }
    _A_in = _A_setup()

    def _B_setup():
        B, Sq, D = 16, 48, 512
        H, Sk, Dh = 32, 512, 128
        return {
            "x": _w((lambda *s: torch.randn(*s, dtype=torch.bfloat16) * 0.8)(B, Sq, D)),
            "k_cache": _w((lambda *s: torch.randn(*s, dtype=torch.bfloat16) * 0.8)(B, H, Sk, Dh)),
            "v_cache": _w((lambda *s: torch.randn(*s, dtype=torch.bfloat16) * 0.05)(B, H, Sk, Dh)),
            "wq": _w((lambda *s: torch.randn(*s, dtype=torch.bfloat16) * 0.8)(D, H * Dh) * (D ** -0.5)),
            "wo": _w((lambda *s: torch.randn(*s, dtype=torch.bfloat16) * 0.05)(H * Dh, D) * ((H * Dh) ** -0.5)),
        }
    _B_in = _B_setup()

    return {
        "A_x": _A_in["x"],
        "A_k_cache": _A_in["k_cache"],
        "A_v_cache": _A_in["v_cache"],
        "A_wq": _A_in["wq"],
        "A_wo": _A_in["wo"],
        "B_x": _B_in["x"],
        "B_k_cache": _B_in["k_cache"],
        "B_v_cache": _B_in["v_cache"],
        "B_wq": _B_in["wq"],
        "B_wo": _B_in["wo"],
    }

def reference(A_x, A_k_cache, A_v_cache, A_wq, A_wo, B_x, B_k_cache, B_v_cache, B_wq, B_wo):
    def _A_ref(x, k_cache, v_cache, wq, wo):
        B, Sq, D = x.shape
        Hq, Dh = 32, 128
        Hkv = k_cache.shape[1]
        rep = Hq // Hkv
        q = (lambda x, *d: x.permute(*d))((x @ wq).reshape(B, Sq, Hq, Dh), 0, 2, 1, 3)
        k = (lambda x, n, axis: torch.repeat_interleave(x, n, dim=axis))(k_cache, rep, axis=1)
        v = (lambda x, n, axis: torch.repeat_interleave(x, n, dim=axis))(v_cache, rep, axis=1)
        scores = torch.einsum("bhqd,bhkd->bhqk", q, k) * (Dh ** -0.5)
        p = _softmax(scores, axis=-1)
        o = torch.einsum("bhqk,bhkd->bhqd", p, v)
        return (lambda x, *d: x.permute(*d))(o, 0, 2, 1, 3).reshape(B, Sq, Hq * Dh) @ wo

    def _B_ref(x, k_cache, v_cache, wq, wo):
        B, Sq, D = x.shape
        H, Dh = 32, 128
        q = (lambda x, *d: x.permute(*d))((x @ wq).reshape(B, Sq, H, Dh), 0, 2, 1, 3)
        scores = torch.einsum("bhqd,bhkd->bhqk", q, k_cache) * (Dh ** -0.5)
        p = _softmax(scores, axis=-1)
        o = torch.einsum("bhqk,bhkd->bhqd", p, v_cache)
        return (lambda x, *d: x.permute(*d))(o, 0, 2, 1, 3).reshape(B, Sq, H * Dh) @ wo

    a = _A_ref(A_x, A_k_cache, A_v_cache, A_wq, A_wo)
    b = _B_ref(B_x, B_k_cache, B_v_cache, B_wq, B_wo)
    return torch.concatenate([a, b], axis=-1)
```

```python
import sys
sys.path.insert(0, "gen")
from asmlib import *

def prologue(A):
    A("s_cmp_ge_u32 s2, 256")
    A("s_cbranch_scc1 .Lend")
    A("s_memrealtime s[40:41]")
    A("s_load_dwordx4 s[4:7], s[0:1], 8")
    A("s_load_dwordx4 s[8:11], s[0:1], 48")
    A("s_load_dwordx2 s[12:13], s[0:1], 96")
    A("s_load_dwordx4 s[48:51], s[0:1], 24")
    A("s_load_dwordx4 s[52:55], s[0:1], 64")
    A("v_lshrrev_b32 v1, 6, v0")
    A("s_nop 0")
    A("v_readfirstlane_b32 s14, v1")
    A("s_and_b32 s15, s2, 7")
    A("s_lshr_b32 s16, s2, 3")
    A("s_lshr_b32 s17, s16, 1")
    A("s_and_b32 s18, s16, 1")
    A("s_waitcnt lgkmcnt(0)")
    A("s_lshl_b32 s20, s15, 2")
    A("s_lshl_b32 s43, s18, 1")
    A("s_add_u32 s43, s43, s20")
    A("s_lshl_b32 s19, s17, 5")
    A("s_add_u32 s19, s19, s43")
    A("s_lshl_b32 s19, s19, 17")
    A("s_lshl_b32 s20, s17, 3")
    A("s_add_u32 s20, s20, s15")
    A("s_lshl_b32 s20, s20, 17")
    def srd(d, lo, size):
        A("s_mov_b32 s%d, s%d", d, lo); A("s_mov_b32 s%d, s%d", d + 1, lo + 1)
        A("s_mov_b32 s%d, 0x%x", d + 2, size); A("s_mov_b32 s%d, 0x20000", d + 3)
    srd(24, 4, 16 << 20); srd(28, 6, 16 << 20); srd(32, 8, 64 << 20); srd(36, 10, 64 << 20)
    srd(56, 48, 4 << 20); srd(60, 50, 4 << 20); srd(64, 52, 4 << 20); srd(68, 54, 4 << 20)

def epilogue(A):
    A("s_waitcnt vmcnt(0)")
    A("s_memrealtime s[44:45]")
    A("s_waitcnt lgkmcnt(0)")
    A("s_add_u32 s12, s12, 0x0F000000")
    A("s_addc_u32 s13, s13, 0")
    A("v_mov_b32 v4, s40"); A("v_mov_b32 v5, s41"); A("v_mov_b32 v6, s44"); A("v_mov_b32 v7, s45")
    A("s_lshl_b32 s3, s2, 5")
    A("s_lshr_b32 s21, s14, 2")
    A("s_lshl_b32 s21, s21, 4")
    A("s_add_u32 s3, s3, s21")
    A("s_and_b32 s21, s14, 0xfffffffb")
    A("s_cmp_lg_u32 s21, 0")
    A("s_cbranch_scc1 .Lend")
    A("v_mov_b32 v3, s3")
    A("v_and_b32 v8, 63, v0")
    A("v_cmp_eq_u32 vcc, 0, v8")
    A("s_and_saveexec_b64 s[46:47], vcc")
    A("global_store_dwordx4 v3, v[4:7], s[12:13]")
    A("s_waitcnt vmcnt(0)")
    A.label(".Lend")
    A("s_endpgm")

def kv_stream(A, nw, inflight, nt, mode, wavereg="s14", segsel="AB"):
    A("v_and_b32 v2, 63, v0")
    if mode == "regmfma":
        A("v_and_b32 v3, 15, v2")
        A("v_lshrrev_b32 v4, 4, v2")
        A("v_lshlrev_b32 v3, 8, v3")
        A("v_lshl_add_u32 v2, v4, 4, v3")
    else:
        A("v_lshlrev_b32 v2, 4, v2")
    segs = []
    if "A" in segsel: segs += [(24, 20, 128), (28, 20, 128)]
    if "B" in segsel: segs += [(32, 19, 256), (36, 19, 256)]
    ntf = " nt" if nt else ""
    A("s_lshl_b32 s21, %s, 12", wavereg)
    A("s_mul_i32 s22, %s, %d", wavereg, inflight * 1024)
    n = 0
    for (r, off, kb) in segs:
        A("s_add_u32 s23, s%d, s21", off)
        for g in range(kb // (4 * nw)):
            for j in range(4):
                slot = n % inflight
                if n >= inflight:
                    A("s_waitcnt vmcnt(%d)", inflight - 1)
                if mode == "lds":
                    if j == 0 or slot == 0:
                        A("s_add_u32 m0, s22, %d", slot * 1024 - j * 1024 if slot >= j else 0)
                        A("s_nop 0")
                    A("buffer_load_dwordx4 v2, s[%d:%d], s23 offen offset:%d%s lds", r, r + 3, j * 1024, ntf)
                else:
                    o = j * 64 if mode == "regmfma" else j * 1024
                    A("buffer_load_dwordx4 v[%d:%d], v2, s[%d:%d], s23 offen offset:%d%s", 8 + slot * 4, 11 + slot * 4, r, r + 3, o, ntf)
                n += 1
            A("s_add_u32 s23, s23, %d", 4096 * nw)

def w_stream(A, inflight, reps=1):
    A("v_and_b32 v2, 63, v0")
    A("s_sub_u32 s21, s14, 4")
    A("v_and_b32 v3, 15, v2")
    A("v_lshrrev_b32 v4, 4, v2")
    A("v_lshlrev_b32 v5, 16, v4")
    A("v_lshl_add_u32 v5, v3, 4, v5")
    A("v_lshlrev_b32 v6, 13, v4")
    A("v_lshl_add_u32 v6, v3, 4, v6")
    n = 0
    for rep in range(reps):
      for br in range(2):
        A("s_lshr_b32 s22, s21, 1")
        A("s_add_u32 s22, s22, s43")
        A("s_lshl_b32 s22, s22, 8")
        A("s_and_b32 s23, s21, 1")
        A("s_lshl_b32 s23, s23, 21")
        A("s_add_u32 s23, s23, s22")
        r = 56 + 8 * br
        for kb in range(8):
            for i in range(8):
                slot = n % inflight
                if n >= inflight: A("s_waitcnt vmcnt(%d)", inflight - 1)
                A("buffer_load_dwordx4 v[%d:%d], v5, s[%d:%d], s23 offen", 8 + slot * 4, 11 + slot * 4, r, r + 3)
                A("s_add_u32 s23, s23, %d", 8192 if i < 7 else 8192 * 25)
                n += 1
        A("s_lshl_b32 s23, s43, 17")
        A("s_lshl_b32 s22, s21, 8")
        A("s_add_u32 s23, s23, s22")
        r = 60 + 8 * br
        for kb in range(8):
            for i in range(8):
                slot = n % inflight
                if n >= inflight: A("s_waitcnt vmcnt(%d)", inflight - 1)
                o = i * 1024
                if i < 4:
                    A("buffer_load_dwordx4 v[%d:%d], v6, s[%d:%d], s23 offen offset:%d", 8 + slot * 4, 11 + slot * 4, r, r + 3, o)
                else:
                    if i == 4: A("s_add_u32 s23, s23, 4096")
                    A("buffer_load_dwordx4 v[%d:%d], v6, s[%d:%d], s23 offen offset:%d", 8 + slot * 4, 11 + slot * 4, r, r + 3, o - 4096)
                n += 1
            A("s_add_u32 s23, s23, %d", 32768 - 4096)

def finish(A, fn, nwaves, lds, nv):
    name = KN + "_kernel"
    lds = max(lds, 81920 + 1024)
    txt = HEADER + "; @launch grid=(256,1,1) block=(%d,1,1) lds=%d\n" % (nwaves * 64, lds) + TARGET + kernel_open(name) + A.text() + kernel_desc(name, nv, 80, (nv + 3) // 4 * 4)
    open(fn, "w").write(txt)

def gen(nw, inflight, nt, mode, fn, segsel="AB"):
    A = Asm(); prologue(A); kv_stream(A, nw, inflight, nt, mode, segsel=segsel); epilogue(A)
    finish(A, fn, nw, nw * inflight * 1024 if mode == "lds" else 0, 8 + inflight * 4 if mode != "lds" else 16)

def gen_mix(inflight, nt, winfl, fn, kv=True, reps=1):
    A = Asm(); prologue(A)
    A("s_cmp_ge_u32 s14, 4")
    A("s_cbranch_scc1 .Lw")
    if kv: kv_stream(A, 4, inflight, nt, "lds")
    A("s_branch .Ljoin")
    A.label(".Lw")
    w_stream(A, winfl, reps)
    A.label(".Ljoin")
    epilogue(A)
    finish(A, fn, 8, 4 * inflight * 1024, 8 + winfl * 4)

if __name__ == "__main__":
    d = "bench/"
    gen(4, 16, 0, "lds", d + "s_lds_4x16.s")
    gen(4, 32, 0, "lds", d + "s_lds_4x32.s")
    gen(4, 32, 1, "lds", d + "s_lds_4x32nt.s")
    gen(4, 24, 1, "lds", d + "s_lds_4x24nt.s")
    gen(4, 16, 1, "lds", d + "s_lds_4x16nt.s")
    gen(4, 8, 1, "lds", d + "s_lds_4x8nt.s")
    gen(2, 32, 1, "lds", d + "s_lds_2x32nt.s")
    gen(2, 60, 1, "lds", d + "s_lds_2x60nt.s")
    gen(4, 32, 1, "reg", d + "s_reg_4x32nt.s")
    gen(4, 32, 0, "reg", d + "s_reg_4x32.s")
    gen(4, 32, 0, "regmfma", d + "s_regmfma_4x32.s")
    gen(4, 32, 1, "regmfma", d + "s_regmfma_4x32nt.s")
    gen_mix(24, 1, 16, d + "m_24nt_w16.s")
    gen_mix(24, 1, 8, d + "m_24nt_w8.s")
    gen_mix(24, 0, 16, d + "m_24_w16.s")
    gen_mix(24, 1, 16, d + "m_now_w16.s", kv=False)
    gen_mix(24, 1, 32, d + "m_now_w32.s", kv=False)
    gen_mix(24, 1, 16, d + "m_now_w16r4.s", kv=False, reps=4)
    gen_mix(24, 1, 32, d + "m_now_w32r4.s", kv=False, reps=4)

def l2_prefetch(A, nwaves_doing, wave_sub, nt=False):
    ntf = " nt" if nt else ""
    A("v_and_b32 v2, 63, v0")
    A("v_lshlrev_b32 v2, 4, v2")
    A("s_sub_u32 s21, s14, %d", wave_sub)
    A("s_lshl_b32 s22, s16, 4")
    A("s_lshl_b32 s23, s21, 2")
    A("s_add_u32 s22, s22, s23")
    A("s_lshl_b32 s23, s22, 13")
    A("s_lshl_b32 s3, s15, 10")
    A("s_add_u32 s23, s23, s3")
    n = 0
    for br in range(2):
        for i in range(4):
            A("s_add_u32 s3, s23, %d", i * 8192)
            A("buffer_load_dwordx4 v[%d:%d], v2, s[%d:%d], s3 offen%s", 8 + 4 * n, 11 + 4 * n, 56 + 8 * br, 59 + 8 * br, ntf); n += 1
    A("s_lshl_b32 s3, s15, 9")
    A("s_add_u32 s22, s22, s3")
    A("s_lshl_b32 s23, s22, 10")
    for br in range(2):
        for i in range(4):
            A("buffer_load_dwordx4 v[%d:%d], v2, s[%d:%d], s23 offen offset:%d%s", 8 + 4 * n, 11 + 4 * n, 60 + 8 * br, 63 + 8 * br, i * 1024, ntf); n += 1

def gen_mix2(inflight, winfl, fn, kv=True, pf=True, pfwait=True, pfnt=False, reps=1, wfirst=False):
    A = Asm(); prologue(A)
    A("s_cmp_ge_u32 s14, 4")
    A("s_cbranch_scc1 .Lw")
    if kv: kv_stream(A, 4, inflight, 1, "lds")
    A("s_branch .Ljoin")
    A.label(".Lw")
    if wfirst: A("s_setprio 3")
    if pf:
        l2_prefetch(A, 4, 4, pfnt)
        if pfwait: A("s_waitcnt vmcnt(0)")
    w_stream(A, winfl, reps)
    A.label(".Ljoin")
    epilogue(A)
    finish(A, fn, 8, 4 * inflight * 1024, 8 + max(winfl, 16) * 4)

if __name__ == "__main__":
    d = "bench/"
    gen_mix2(8, 16, d + "n_kv8_w16_nopf.s", pf=False)
    gen_mix2(8, 16, d + "n_kv8_w16_pf.s")
    gen_mix2(4, 16, d + "n_kv4_w16_pf.s")
    gen_mix2(8, 32, d + "n_kv8_w32_pf.s")
    gen_mix2(24, 16, d + "n_kv24_w16_pf.s")
    gen_mix2(8, 16, d + "n_nokv_w16_pf.s", kv=False)
    gen_mix2(8, 16, d + "n_nokv_w16_pfnt.s", kv=False, pfnt=True)
    gen_mix2(8, 16, d + "n_kv8_w16_pfnt.s", pfnt=True)
    gen_mix2(8, 16, d + "n_kv8_w16_pf_prio.s", wfirst=True)
    gen_mix2(6, 24, d + "n_kv6_w24_pf.s")
    gen(4, 4, 1, "lds", d + "s_lds_4x4nt.s")
    gen(4, 6, 1, "lds", d + "s_lds_4x6nt.s")

def gen_few(nw, inflight, nt, mode, fn, nactive):
    A = Asm(); prologue(A)
    A("s_cmp_ge_u32 s2, %d", nactive)
    A("s_cbranch_scc1 .Lskip")
    kv_stream(A, nw, inflight, nt, mode, segsel="B")
    A.label(".Lskip")
    epilogue(A)
    finish(A, fn, nw, nw * inflight * 1024 if mode == "lds" else 0, 8 + inflight * 4 if mode != "lds" else 16)

if __name__ == "__main__":
    d = "bench/"
    for infl in (2, 4, 8, 12, 16, 32):
        gen_few(4, infl, 1, "lds", d + "f32_lds_4x%d.s" % infl, 32)
    gen_few(4, 32, 1, "reg", d + "f32_reg_4x32.s", 32)
    gen_few(8, 16, 1, "lds", d + "f32_lds_8x16.s", 32)
    gen_few(16, 8, 1, "lds", d + "f32_lds_16x8.s", 32)
    gen_few(1, 60, 1, "lds", d + "f32_lds_1x60.s", 32)
    gen_few(4, 32, 1, "lds", d + "f128_lds_4x32.s", 128)
    gen_few(4, 32, 1, "lds", d + "f96_lds_4x32.s", 96)
    gen_few(4, 32, 1, "lds", d + "f160_lds_4x32.s", 160)

if __name__ == "__main__":
    d = "bench/"
    for (k, w) in ((5,3),(5,4),(6,3),(6,4),(4,4),(6,2),(8,2),(8,4),(5,2),(12,2),(12,4),(6,6)):
        gen_mix2(k, w, d + "q_kv%d_w%d.s" % (k, w))
```

```python
KN = "concat_heads__gqa_block_cached__mha_block_cached__near_ridge"

HEADER = """; Kernarg layout for this problem (104 bytes, ptrs only, base s[0:1]):
"""


class Asm:
    def __init__(self):
        self.lines = []
        self._lab = 0

    def __call__(self, s, *a):
        if a:
            s = s % a
        for ln in s.split("\n"):
            self.lines.append("    " + ln.strip() if ln.strip() and not ln.strip().endswith(":") else ln.strip())

    def c(self, s):
        self.lines.append("    ; " + s)

    def label(self, name):
        self.lines.append(name + ":")

    def newlabel(self, base="L"):
        self._lab += 1
        return ".%s_%d" % (base, self._lab)

    def text(self):
        return "\n".join(self.lines) + "\n"


def v(i, n=1):
    return "v%d" % i if n == 1 else "v[%d:%d]" % (i, i + n - 1)


def a(i, n=1):
    return "a%d" % i if n == 1 else "a[%d:%d]" % (i, i + n - 1)


def s(i, n=1):
    return "s%d" % i if n == 1 else "s[%d:%d]" % (i, i + n - 1)


def kernel_open(name):
    return ".text\n.globl %s\n.p2align 8\n.type %s,@function\n%s:\n" % (name, name, name)


def kernel_desc(name, vgpr, sgpr, accum):
    return (""".section .rodata,"a"
.p2align 6
.amdhsa_kernel %s
  .amdhsa_next_free_vgpr %d
  .amdhsa_next_free_sgpr %d
  .amdhsa_accum_offset %d
  .amdhsa_group_segment_fixed_size 0
  .amdhsa_kernarg_size 104
  .amdhsa_user_sgpr_count 2
  .amdhsa_user_sgpr_kernarg_segment_ptr 1
  .amdhsa_system_sgpr_workgroup_id_x 1
.end_amdhsa_kernel
""" % (name, vgpr, sgpr, accum))


TARGET = '.amdgcn_target "amdgcn-amd-amdhsa--gfx950"\n'
```

```python
import sys
sys.path.insert(0, "gen"); sys.path.insert(0, "bench")
from asmlib import *
from gen_stream import prologue, finish

def gen(fn, nw, kind, nblk=16, per=256, reps=3):
    A = Asm(); prologue(A)
    for i in range(0, 48): A("v_mov_b32 v%d, 0", 100 + i)
    A("s_mov_b32 s30, 0")
    A("v_mov_b32 v9, 0")
    A("s_add_u32 s12, s12, 0x0F000000")
    A("s_addc_u32 s13, s13, 0")
    A("s_lshl_b32 s3, s2, 3")
    A("s_add_u32 s3, s3, s14")
    A("s_lshl_b32 s3, s3, 8")
    A("v_mov_b32 v3, s3")
    A("s_barrier")
    A.label(".Lrep")
    A("s_memtime s[44:45]"); A("s_waitcnt lgkmcnt(0)"); A("v_mov_b32 v10, s44")
    for b in range(nblk):
        for i in range(per):
            if kind == "mfma":
                A("v_mfma_f32_16x16x32_bf16 v[%d:%d], v[100:103], v[104:107], v[%d:%d]", 108 + (i % 8) * 4, 111 + (i % 8) * 4, 108 + (i % 8) * 4, 111 + (i % 8) * 4)
            elif kind == "fma":
                A("v_fma_f32 v%d, v100, v101, v%d", 108 + i % 16, 108 + i % 16)
            elif kind == "mix":
                if i % 2 == 0:
                    A("v_mfma_f32_16x16x32_bf16 v[%d:%d], v[100:103], v[104:107], v[%d:%d]", 108 + (i % 8) * 4, 111 + (i % 8) * 4, 108 + (i % 8) * 4, 111 + (i % 8) * 4)
                else:
                    A("v_fma_f32 v%d, v100, v101, v%d", 140 + i % 8, 140 + i % 8)
        A("s_memtime s[44:45]"); A("s_waitcnt lgkmcnt(0)"); A("v_mov_b32 v%d, s44", 11 + b)
    A("v_and_b32 v8, 63, v0")
    A("v_cmp_eq_u32 vcc, 0, v8")
    A("s_and_saveexec_b64 s[46:47], vcc")
    for i in range(nblk + 1):
        A("global_store_dword v3, v%d, s[12:13] offset:%d", 10 + i, i * 4)
    A("s_mov_b64 exec, s[46:47]")
    A("s_waitcnt vmcnt(0)")
    A("v_add_u32 v3, %d, v3", (nblk + 1) * 4)
    A("s_add_u32 s30, s30, 1")
    A("s_cmp_lt_u32 s30, %d", reps)
    A("s_cbranch_scc1 .Lrep")
    A.label(".Lend")
    A("s_endpgm")
    finish(A, fn, nw, 0, 256)

d = "bench/"
gen(d + "c_mfma_1.s", 1, "mfma")
gen(d + "c_fma_1.s", 1, "fma")
gen(d + "c_fma_8.s", 8, "fma")
gen(d + "c_mix_8.s", 8, "mix")
gen(d + "c_mix_4.s", 4, "mix")
gen(d + "c_fma_big.s", 1, "fma", nblk=30, per=480, reps=2)
gen(d + "c_mix_big.s", 4, "mix", nblk=30, per=480, reps=2)
```

```python
import re

TRANS = ("v_exp_f32", "v_log_f32", "v_rcp_f32", "v_rsq_f32", "v_sqrt_f32", "v_sin_f32", "v_cos_f32", "v_rcp_iflag_f32")


def regs_of(op):
    op = op.strip()
    neg = op.lstrip("-")
    if neg.startswith("abs("):
        neg = neg[4:-1]
    m = re.fullmatch(r"([vsa])\[(\d+):(\d+)\]", neg)
    if m:
        return {(m.group(1), i) for i in range(int(m.group(2)), int(m.group(3)) + 1)}
    m = re.fullmatch(r"([vsa])(\d+)", neg)
    if m:
        return {(m.group(1), int(m.group(2)))}
    if neg in ("vcc", "vcc_lo", "vcc_hi"):
        return {("x", "vcc")}
    if neg in ("exec", "exec_lo", "exec_hi"):
        return {("x", "exec")}
    if neg == "m0":
        return {("x", "m0")}
    return set()


class Ins:
    __slots__ = ("mn", "kind", "wr", "rd", "srcA", "srcB", "srcC", "passes", "states", "storedata", "lds_dma", "text")


def parse(text):
    t = text.split(";")[0].strip()
    t = re.sub(r"\s+(op_sel|op_sel_hi|neg_lo|neg_hi|quad_perm):\[[0-9,]*\]", "", t)
    parts = t.split(None, 1)
    mn = parts[0]
    rest = parts[1] if len(parts) > 1 else ""
    ops = [o.strip() for o in rest.split(",")] if rest else []
    mods = ""
    if ops:
        last = ops[-1].split(None, 1)
        ops[-1] = last[0]
        mods = last[1] if len(last) > 1 else ""
    I = Ins()
    I.mn = mn; I.text = text; I.wr = set(); I.rd = set(); I.srcA = I.srcB = I.srcC = set()
    I.passes = 0; I.states = 1; I.storedata = set(); I.lds_dma = False
    R = [regs_of(o) for o in ops]
    if mn.startswith("v_mfma"):
        I.kind = "mfma"
        I.wr = R[0]; I.srcA = R[1]; I.srcB = R[2]; I.srcC = R[3]; I.rd = R[1] | R[2] | R[3]
        I.passes = 8 if "32x32" in mn else 4
    elif mn.startswith("v_permlane") and "swap" in mn:
        I.kind = "permlane"; I.wr = R[0] | R[1]; I.rd = R[0] | R[1]
    elif mn.startswith("v_readfirstlane") or mn.startswith("v_readlane"):
        I.kind = "readlane"; I.wr = R[0]; I.rd = set().union(*R[1:])
    elif mn.startswith("v_cmp"):
        I.kind = "valu"; I.wr = R[0]; I.rd = set().union(*R[1:])
        if mn.startswith("v_cmpx"):
            I.wr = I.wr | {("x", "exec")}
    elif mn.startswith("v_"):
        I.kind = "trans" if any(mn.startswith(x) for x in TRANS) else "valu"
        I.wr = R[0]; srcs = R[1:]
        if "_co_" in mn:
            I.wr = R[0] | R[1]; srcs = R[2:]
        I.rd = set().union(*srcs) if srcs else set()
        if mn.startswith("v_fmac") or mn.startswith("v_writelane"):
            I.rd |= R[0]
        if mn.startswith("v_cndmask") and len(ops) == 3:
            I.rd |= {("x", "vcc")}
        if mn.endswith("_dpp") or "row_" in mods:
            I.kind = "dpp"
    elif mn.startswith("ds_"):
        I.kind = "ds"
        if mn.startswith("ds_read") or mn.startswith("ds_bpermute") or mn.startswith("ds_swizzle") or "_rtn" in mn:
            I.wr = R[0]; I.rd = set().union(*R[1:])
        else:
            I.rd = set().union(*R)
    elif mn.startswith("buffer_") or mn.startswith("global_"):
        I.kind = "vmem"
        words = mods.split()
        if mn in ("buffer_wbl2", "buffer_inv"):
            pass
        elif "lds" in words or "_lds_" in mn:
            I.lds_dma = True; I.rd = set().union(*R) | {("x", "m0")}
        elif "_load" in mn:
            I.wr = R[0]; I.rd = set().union(*R[1:])
        elif "atomic" in mn and "sc0" in words:
            I.wr = R[0]; I.rd = set().union(*R)
        else:
            I.rd = set().union(*R)
            if "x3" in mn or "x4" in mn:
                I.storedata = R[0] if mn.startswith("buffer_") else R[1]
    elif mn == "s_nop":
        I.kind = "nop"; I.states = int(ops[0], 0) + 1
    elif mn.startswith("s_"):
        I.kind = "salu"
        if mn.startswith("s_cmp") or mn.startswith("s_bitcmp") or mn.startswith("s_cbranch") or mn in (
                "s_branch", "s_waitcnt", "s_barrier", "s_endpgm", "s_sleep", "s_setprio", "s_setpc_b64"):
            I.rd = set().union(*R) if R else set()
        else:
            I.wr = R[0] if R else set(); I.rd = set().union(*R[1:]) if len(R) > 1 else set()
            if "saveexec" in mn:
                I.wr = I.wr | {("x", "exec")}
    else:
        raise ValueError("cannot classify: " + text)
    return I


VALUISH = ("valu", "trans", "dpp", "permlane", "readlane")


def need(prev, cur):
    n = 0
    vw = {r for r in prev.wr if r[0] in "va"}
    sw = {r for r in prev.wr if r[0] == "s" or r == ("x", "vcc")}
    if prev.kind in VALUISH:
        if cur.kind == "mfma" and vw & cur.rd: n = max(n, 2)
        if cur.kind == "permlane" and vw & cur.rd: n = max(n, 2)
        if cur.kind == "dpp" and vw & cur.rd: n = max(n, 2)
        if cur.kind == "readlane" and vw & cur.rd: n = max(n, 1)
        if prev.kind == "trans" and cur.kind in ("valu", "dpp", "permlane", "readlane", "mfma") and vw & cur.rd: n = max(n, 2 if cur.kind == "mfma" else 1)
        if sw & cur.rd:
            if cur.kind in VALUISH: n = max(n, 4 if cur.kind == "readlane" else 2)
            if cur.kind == "vmem": n = max(n, 5)
            if cur.kind == "salu": n = max(n, 4)
        if ("x", "exec") in prev.wr:
            if cur.kind in ("readlane", "permlane", "mfma"): n = max(n, 4)
            if cur.kind == "dpp": n = max(n, 5)
    if prev.kind == "mfma":
        p = prev.passes
        full = {4: 8, 8: 12}[p]
        if cur.kind == "mfma":
            if prev.wr & (cur.srcA | cur.srcB): n = max(n, full)
            if prev.wr & cur.srcC and not (prev.wr == cur.srcC and cur.passes == p): n = max(n, {4: 6, 8: 10}[p])
            if prev.wr & cur.wr and not (prev.wr == cur.wr and cur.passes == p): n = max(n, {4: 6, 8: 10}[p])
        elif cur.kind in VALUISH or cur.kind in ("ds", "vmem"):
            if prev.wr & (cur.rd | cur.wr): n = max(n, full)
            if cur.kind in VALUISH and prev.srcC & cur.wr: n = max(n, {4: 3, 8: 7}[p])
    if prev.kind == "salu" and ("x", "m0") in prev.wr and cur.lds_dma: n = max(n, 1)
    if prev.storedata and (prev.storedata & cur.wr): n = max(n, 2)
    return n


class HAsm:
    def __init__(self):
        self.lines = []
        self.hist = []
        self._lab = 0
        self.nops = 0
        self.count = 0

    def _emit(self, text):
        I = parse(text)
        dist = 0
        req = 0
        for P in reversed(self.hist[-24:]):
            r = need(P, I) - dist
            if r > req: req = r
            dist += P.states
            if dist > 20: break
        if req > 0:
            self.nops += 1
            N = parse("s_nop %d" % (req - 1))
            self.lines.append("    s_nop %d" % (req - 1))
            self.hist.append(N)
        self.lines.append("    " + text)
        self.hist.append(I)
        self.count += 1

    def __call__(self, s, *a):
        if a:
            s = s % a
        for ln in s.split("\n"):
            ln = ln.strip()
            if not ln: continue
            if ln.endswith(":"):
                self.lines.append(ln)
            elif ln.startswith(".") or ln.startswith(";"):
                self.lines.append("    " + ln)
            else:
                self._emit(ln)

    def c(self, s):
        self.lines.append("    ; " + s)

    def label(self, name):
        self.lines.append(name + ":")

    def newlabel(self, base="L"):
        self._lab += 1
        return ".%s_%d" % (base, self._lab)

    def settle(self):
        self._emit("s_nop 7")
        self._emit("s_nop 3")

    def forget(self):
        self.hist = []

    def text(self):
        return "\n".join(self.lines) + "\n"
```

```python
import sys
sys.path.insert(0, "gen"); sys.path.insert(0, "bench")
from asmlib import *
from hasm import HAsm
from gen_stream import prologue, finish

def gen(fn, pat, dma, infl=10, reps=64, swz=False, prio=0, ldw=False):
    A = HAsm(); prologue(A)
    A("v_and_b32 v1, 63, v0")
    A("v_lshlrev_b32 v6, 3, v1"); A("v_lshlrev_b32 v7, 4, v1")
    if swz: A("v_xor_b32 v7, 0x60, v7")
    A("v_mov_b32 v8, 130000"); A("v_mov_b32 v9, 1")
    for i in range(100): A("v_mov_b32 v%d, 0", 100 + i)
    A("s_mov_b32 s30, 0")
    A("s_barrier")
    A("s_memtime s[44:45]"); A("s_memrealtime s[46:47]"); A("s_waitcnt lgkmcnt(0)")
    A("s_cmp_ge_u32 s14, 4"); A("s_cbranch_scc1 .Ldma")
    A.label(".Lrep")
    k = 0
    for i in range(16):
        for tok in pat.split():
            k += 1
            if tok == "M": A("v_mfma_f32_16x16x32_bf16 v[%d:%d], v[100:103], v[104:107], v[%d:%d]", 108 + (k % 8) * 4, 111 + (k % 8) * 4, 108 + (k % 8) * 4, 111 + (k % 8) * 4)
            elif tok == "t": A("ds_read_b64_tr_b16 v[%d:%d], v6 offset:%d", 32 + 2 * (k % 14), 33 + 2 * (k % 14), (k % 32) * 512)
            elif tok == "q": A("ds_read_b128 v[%d:%d], v7 offset:%d", 64 + 4 * (k % 8), 67 + 4 * (k % 8), (k % 16) * 1024)
            elif tok == "x":
                if i % 8 == 0: A("ds_write_b8 v8, v9 offset:4")
            elif tok == "r":
                if i % 8 == 4: A("ds_read_b32 v10, v8 offset:0")
            elif tok == "w": A("s_waitcnt lgkmcnt(8)")
    A("s_add_u32 s30, s30, 1")
    A("s_cmp_lt_u32 s30, %d", reps)
    A("s_cbranch_scc1 .Lrep")
    A("s_branch .Ldone")
    A.label(".Ldma")
    if dma:
        if prio: A("s_setprio %d", prio)
        A("s_lshl_b32 s22, s43, 17")
        A("s_lshl_b32 s21, s14, 15"); A("s_add_u32 s22, s22, s21"); A("s_and_b32 s22, s22, 0x3fffff")
        A("s_lshl_b32 m0, s14, 14")
        A.label(".Ldrep")
        A("s_mov_b32 s23, s22")
        for i in range(32):
            A("s_waitcnt vmcnt(%d)", infl)
            A("buffer_load_dwordx4 v7, s[68:71], s23 offen offset:%d lds", (i % 4) * 1024)
            if i % 4 == 3: A("s_add_u32 s23, s23, 4096")
            if ldw and i % 8 == 3: A("ds_write_b8 v8, v9 offset:8")
            if ldw and i % 8 == 7:
                A("ds_read_b32 v10, v8 offset:4"); A("s_waitcnt lgkmcnt(0)")
                A("v_readfirstlane_b32 s31, v10")
                A("s_getreg_b32 s29, hwreg(HW_REG_IB_STS, 0, 4)")
        A("s_add_u32 s30, s30, 1")
        A("s_cmp_lt_u32 s30, %d", dma)
        A("s_cbranch_scc1 .Ldrep")
    A.label(".Ldone")
    A("s_waitcnt lgkmcnt(0) vmcnt(0)")
    A("s_memtime s[48:49]"); A("s_memrealtime s[50:51]"); A("s_waitcnt lgkmcnt(0)")
    A("s_sub_u32 s44, s48, s44"); A("s_sub_u32 s46, s50, s46")
    A("s_add_u32 s12, s12, 0x0F000000"); A("s_addc_u32 s13, s13, 0")
    A("s_lshl_b32 s3, s2, 3"); A("s_add_u32 s3, s3, s14"); A("s_lshl_b32 s3, s3, 3")
    A("v_mov_b32 v3, s3"); A("v_mov_b32 v4, s44"); A("v_mov_b32 v5, s46")
    A("v_cmp_eq_u32 vcc, 0, v1")
    A("s_and_saveexec_b64 s[46:47], vcc")
    A("global_store_dwordx2 v3, v[4:5], s[12:13]")
    A("s_waitcnt vmcnt(0)")
    A.label(".Lend")
    A("s_endpgm")
    finish(A, fn, 8, 131072, 256)
d = "bench/"
P = "M t M t M w"
tests = [("nod", P, 0), ("d", P, 32), ("dM", "M M M", 32), ("dt", "t t w", 8), ("donly", "w", 32), ("d3", "M t M t M q w", 32), ("nod3", "M t M t M q w", 0)]
for nm, p, dm in tests: gen(d + "z_%s.s" % nm, p, dm)
gen(d + "z_dsw.s", P, 32, swz=True); gen(d + "z_dprio.s", P, 32, prio=2); gen(d + "z_d13.s", P, 32, infl=13); gen(d + "z_d5.s", P, 32, infl=5)

gen(d + "z_x.s", "M t M t M x w", 32); gen(d + "z_xr.s", "M t M t r M x w", 32); gen(d + "z_xn.s", "M t M t r M x w", 0); gen(d + "z_ldw.s", "M t M t r M x w", 32, ldw=True, prio=2)
```

```python
import sys
sys.path.insert(0, "gen"); sys.path.insert(0, "bench")
from asmlib import *
import gen_stream as gs

def gen(fn, pat, infl=13, pre=0, prefl="", rot=None):
    A = Asm(); gs.prologue(A)
    A("v_and_b32 v2, 63, v0"); A("v_lshlrev_b32 v2, 4, v2")
    A("s_mul_i32 s22, s14, 16384")
    A("s_mov_b32 m0, s22")
    n = 0
    if pre:
        A("s_lshl_b32 s23, s15, 10"); A("s_lshl_b32 s21, s14, 15"); A("s_add_u32 s23, s23, s21")
        for u in range(pre // 16):
            for e in range(4):
                if n >= infl: A("s_waitcnt vmcnt(%d)", infl - 1)
                A("buffer_load_dwordx4 v2, s[64:67], s23 offen%s lds", prefl); n += 1
                A("s_add_u32 s23, s23, %d", 8192 if e < 3 else 8192 * 13)
        A("s_waitcnt vmcnt(0)")
    A("s_memrealtime s[40:41]")
    A("s_cmp_eq_u32 s18, 0"); A("s_cbranch_scc1 .Ljoin")
    A("s_lshl_b32 s19, s17, 3"); A("s_add_u32 s19, s19, s15"); A("s_lshl_b32 s19, s19, 19")
    A("s_lshl_b32 s21, s14, %d", 17 if pat.startswith("head") else 12)
    A("s_add_u32 s19, s19, s21")
    st = 4096 if pat.startswith("head") else 16384
    seq = []
    if pat == "u16":
        for c in range(8):
            for r in (32, 36):
                for T in range(4): seq.append((r, T * 131072 + c * 16384))
    elif pat == "u32":
        for c in range(4):
            for r in (32, 36):
                for T in range(4):
                    for h in range(2): seq.append((r, T * 131072 + c * 32768 + h * 16384))
    elif pat.endswith("alt"):
        for c in range(8):
            for r in (32, 36):
                for T in range(4): seq.append((r, (4 * c + T) * st))
    else:
        for r in (32, 36):
            for T in range(32): seq.append((r, T * st))
    n = 0
    if pat in ("u8", "u4"):
        A("s_lshl_b32 s21, s14, 12"); A("s_sub_u32 s19, s19, s21")
        A("s_lshl_b32 s21, s14, 10"); A("s_add_u32 s19, s19, s21")
        seq = []
        for c in range(8):
            for r in (32, 36):
                for hh in range(2):
                    order = [(T, t) for T in range(4) for t in range(2)] if pat == "u8" else [(T, t) for t in range(2) for T in range(4)]
                    for T, t in order:
                        A("s_add_u32 s23, s19, %d", T * 131072 + c * 16384 + hh * 8192 + t * 4096)
                        if n >= infl: A("s_waitcnt vmcnt(%d)", infl - 1)
                        A("buffer_load_dwordx4 v2, s[%d:%d], s23 offen nt lds", r, r + 3); n += 1
    if rot:
        A("s_mul_i32 s24, s17, %d", rot[0]); A("s_mul_i32 s25, s15, %d", rot[1]); A("s_add_u32 s24, s24, s25")
        A("s_mul_i32 s25, s14, %d", rot[2]); A("s_add_u32 s24, s24, s25"); A("s_lshl_b32 s24, s24, %d", rot[3])
    for r, off in seq:
        if rot:
            A("s_add_u32 s23, s24, %d", off & 0x1ffff); A("s_and_b32 s23, s23, 0x1ffff"); A("s_add_u32 s23, s23, %d", off & ~0x1ffff); A("s_add_u32 s23, s23, s19")
        else:
            A("s_add_u32 s23, s19, %d", off)
        for e in range(4):
            if n >= infl: A("s_waitcnt vmcnt(%d)", infl - 1)
            A("buffer_load_dwordx4 v2, s[%d:%d], s23 offen offset:%d nt lds", r, r + 3, e * 1024); n += 1
    A.label(".Ljoin")
    gs.epilogue(A)
    gs.finish(A, fn, 4, 65536, 80)
d = "bench/"
for p in ("lin", "head", "headalt", "linalt"): gen(d + "pt_%s.s" % p, p)
gen(d + "pt_headalt_pre.s", "headalt", pre=512)
gen(d + "pt_headalt_prent.s", "headalt", pre=512, prefl=" nt")
gen(d + "pt_headalt32.s", "headalt", infl=32)

gen(d + "pt_u16.s", "u16"); gen(d + "pt_u32.s", "u32")

gen(d + "pt_u8.s", "u8"); gen(d + "pt_u4.s", "u4")

gen(d + "pt_headrot.s", "headalt", rot=(2, 1, 8, 12)); gen(d + "pt_u16rot.s", "u16", rot=(1, 3, 0, 14))
```

```python
import sys
sys.path.insert(0, "gen"); sys.path.insert(0, "bench")
from asmlib import *
import gen_stream as gs

def gen(fn, pat, infl=13, pre=0, prefl="", rot=None, touch=None, who=0):
    A = Asm(); gs.prologue(A)
    A("v_and_b32 v2, 63, v0"); A("v_lshlrev_b32 v2, 4, v2")
    A("s_mul_i32 s22, s14, 16384")
    A("s_mov_b32 m0, s22")
    n = 0
    if pre:
        A("s_lshl_b32 s23, s15, 10"); A("s_lshl_b32 s21, s14, 15"); A("s_add_u32 s23, s23, s21")
        for u in range(pre // 16):
            for e in range(4):
                if n >= infl: A("s_waitcnt vmcnt(%d)", infl - 1)
                A("buffer_load_dwordx4 v2, s[64:67], s23 offen%s lds", prefl); n += 1
                A("s_add_u32 s23, s23, %d", 8192 if e < 3 else 8192 * 13)
        A("s_waitcnt vmcnt(0)")
    if touch is not None:
        if touch:
            A("s_cmp_lg_u32 s18, %d", who); A("s_cbranch_scc1 .Lnt")
            A("s_lshl_b32 s19, s17, 3"); A("s_add_u32 s19, s19, s15"); A("s_lshl_b32 s19, s19, 19")
            A("s_lshl_b32 s21, s14, 17"); A("s_add_u32 s19, s19, s21")
            A("v_and_b32 v3, 63, v0"); A("v_lshlrev_b32 v3, %d, v3", touch); A("v_and_b32 v3, 0x1ffff, v3")
            A("buffer_load_dword v8, v3, s[32:35], s19 offen nt"); A("buffer_load_dword v9, v3, s[36:39], s19 offen nt")
            A("s_waitcnt vmcnt(0)")
            A.label(".Lnt")
        A("s_sleep 127"); A("s_sleep 127")
    A("s_memrealtime s[40:41]")
    A("s_cmp_eq_u32 s18, 0"); A("s_cbranch_scc1 .Ljoin")
    A("s_lshl_b32 s19, s17, 3"); A("s_add_u32 s19, s19, s15"); A("s_lshl_b32 s19, s19, 19")
    A("s_lshl_b32 s21, s14, %d", 17 if pat.startswith("head") else 12)
    A("s_add_u32 s19, s19, s21")
    st = 4096 if pat.startswith("head") else 16384
    seq = []
    if pat == "u16":
        for c in range(8):
            for r in (32, 36):
                for T in range(4): seq.append((r, T * 131072 + c * 16384))
    elif pat == "u32":
        for c in range(4):
            for r in (32, 36):
                for T in range(4):
                    for h in range(2): seq.append((r, T * 131072 + c * 32768 + h * 16384))
    elif pat.endswith("alt"):
        for c in range(8):
            for r in (32, 36):
                for T in range(4): seq.append((r, (4 * c + T) * st))
    else:
        for r in (32, 36):
            for T in range(32): seq.append((r, T * st))
    n = 0
    if pat == "u16i":
        A("s_lshl_b32 s21, s14, 12"); A("s_sub_u32 s19, s19, s21")
        A("s_lshl_b32 s21, s14, 10"); A("s_add_u32 s19, s19, s21")
        seq = []
        for c in range(8):
            for r in (32, 36):
                for T in range(4):
                    for t in range(4):
                        A("s_add_u32 s23, s19, %d", T * 131072 + c * 16384 + t * 4096)
                        if n >= infl: A("s_waitcnt vmcnt(%d)", infl - 1)
                        A("buffer_load_dwordx4 v2, s[%d:%d], s23 offen nt lds", r, r + 3); n += 1
    if pat in ("u8", "u4"):
        A("s_lshl_b32 s21, s14, 12"); A("s_sub_u32 s19, s19, s21")
        A("s_lshl_b32 s21, s14, 10"); A("s_add_u32 s19, s19, s21")
        seq = []
        for c in range(8):
            for r in (32, 36):
                for hh in range(2):
                    order = [(T, t) for T in range(4) for t in range(2)] if pat == "u8" else [(T, t) for t in range(2) for T in range(4)]
                    for T, t in order:
                        A("s_add_u32 s23, s19, %d", T * 131072 + c * 16384 + hh * 8192 + t * 4096)
                        if n >= infl: A("s_waitcnt vmcnt(%d)", infl - 1)
                        A("buffer_load_dwordx4 v2, s[%d:%d], s23 offen nt lds", r, r + 3); n += 1
    if rot:
        A("s_mul_i32 s24, s17, %d", rot[0]); A("s_mul_i32 s25, s15, %d", rot[1]); A("s_add_u32 s24, s24, s25")
        A("s_mul_i32 s25, s14, %d", rot[2]); A("s_add_u32 s24, s24, s25"); A("s_lshl_b32 s24, s24, %d", rot[3])
    for r, off in seq:
        if rot:
            A("s_add_u32 s23, s24, %d", off & 0x1ffff); A("s_and_b32 s23, s23, 0x1ffff"); A("s_add_u32 s23, s23, %d", off & ~0x1ffff); A("s_add_u32 s23, s23, s19")
        else:
            A("s_add_u32 s23, s19, %d", off)
        for e in range(4):
            if n >= infl: A("s_waitcnt vmcnt(%d)", infl - 1)
            A("buffer_load_dwordx4 v2, s[%d:%d], s23 offen offset:%d nt lds", r, r + 3, e * 1024); n += 1
    A.label(".Ljoin")
    gs.epilogue(A)
    gs.finish(A, fn, 4, 65536, 80)
d = "bench/"
for p in ("lin", "head", "headalt", "linalt"): gen(d + "pt_%s.s" % p, p)
gen(d + "pt_headalt_pre.s", "headalt", pre=512)
gen(d + "pt_headalt_prent.s", "headalt", pre=512, prefl=" nt")
gen(d + "pt_headalt32.s", "headalt", infl=32)

gen(d + "pt_u16.s", "u16"); gen(d + "pt_u32.s", "u32")

gen(d + "pt_u8.s", "u8"); gen(d + "pt_u4.s", "u4")

gen(d + "pt_headrot.s", "headalt", rot=(2, 1, 8, 12)); gen(d + "pt_u16rot.s", "u16", rot=(1, 3, 0, 14))

gen(d + "pt_u16i.s", "u16i"); gen(d + "pt_u16_40.s", "u16", infl=40); gen(d + "pt_u16_8.s", "u16", infl=8); gen(d + "pt_u16_10.s", "u16", infl=10)

gen(d + "pt_t0.s", "u16", touch=0)
for tt in (12, 14, 16): gen(d + "pt_t%d.s" % tt, "u16", touch=tt); gen(d + "pt_s%d.s" % tt, "u16", touch=tt, who=1)
```
